```python
import torch

def _softmax(x, axis=-1):
    return torch.softmax(x, dim=axis)
def _gelu(x):
    return torch.nn.functional.gelu(x, approximate="tanh")
def _silu(x):
    return torch.nn.functional.silu(x)
def _sigmoid(x):
    return torch.sigmoid(x)
def _layernorm(x, axis=-1, eps=1e-5):
    m = x.mean(dim=axis, keepdim=True)
    v = x.var(dim=axis, keepdim=True, unbiased=False)
    return (x - m) / torch.sqrt(v + eps)
def _scatter_add(tgt, idx, src, axis=0):
    return tgt.clone().index_add_(axis, idx, src)
def _segment_sum(src, seg, n):
    out = torch.zeros((n,) + src.shape[1:], dtype=src.dtype)
    return out.index_add_(0, seg, src)
def _pad(x, pw):
    flat = tuple(v for pair in reversed(pw) for v in pair)
    return torch.nn.functional.pad(x, flat)

kernel_name = 'standalone__gqa_block_cached__near_ridge'

def setup_inputs():

    _w = (lambda a: (lambda t: t.to(torch.bfloat16) if t.is_floating_point() else t)(torch.as_tensor(a)))
    B, Sq, D = 8, 64, 512
    Hq, Hkv, Sk, Dh = 32, 8, 64, 128
    assert Hq % Hkv == 0, (Hq, Hkv)
    return {
        "x": _w((lambda *s: torch.randn(*s, dtype=torch.bfloat16) * 0.8)(B, Sq, D)),
        "k_cache": _w((lambda *s: torch.randn(*s, dtype=torch.bfloat16) * 0.8)(B, Hkv, Sk, Dh)),
        "v_cache": _w((lambda *s: torch.randn(*s, dtype=torch.bfloat16) * 0.05)(B, Hkv, Sk, Dh)),
        "wq": _w((lambda *s: torch.randn(*s, dtype=torch.bfloat16) * 0.8)(D, Hq * Dh) * (D ** -0.5)),
        "wo": _w((lambda *s: torch.randn(*s, dtype=torch.bfloat16) * 0.05)(Hq * Dh, D) * ((Hq * Dh) ** -0.5)),
    }

def reference(x, k_cache, v_cache, wq, wo):
    B, Sq, D = x.shape
    Hq, Dh = 32, 128
    Hkv = k_cache.shape[1]
    rep = Hq // Hkv
    q = (lambda x, *d: x.permute(*d))((x @ wq).reshape(B, Sq, Hq, Dh), 0, 2, 1, 3)
    k = (lambda x, n, axis: torch.repeat_interleave(x, n, dim=axis))(k_cache, rep, axis=1)
    v = (lambda x, n, axis: torch.repeat_interleave(x, n, dim=axis))(v_cache, rep, axis=1)
    scores = torch.einsum("bhqd,bhkd->bhqk", q, k) * (Dh ** -0.5)
    p = _softmax(scores, axis=-1)
    o = torch.einsum("bhqk,bhkd->bhqd", p, v)
    return (lambda x, *d: x.permute(*d))(o, 0, 2, 1, 3).reshape(B, Sq, Hq * Dh) @ wo
```

```python
class Asm:
    def __init__(self):
        self.lines = []
    def __call__(self, s=""):
        for l in s.split("\n"):
            self.lines.append(l)
    def text(self):
        return "\n".join(self.lines) + "\n"

def header(launch_lines):
    s = ""
    for l in launch_lines:
        s += "; @launch " + l + "\n"
    s += '.amdgcn_target "amdgcn-amd-amdhsa--gfx950"\n.text\n'
    return s

def kernel_begin(name):
    return f".globl {name}\n.p2align 8\n.type {name},@function\n{name}:\n"

def descriptor(name, vgpr=256, sgpr=102, accum=256, extra=""):
    return f""".amdhsa_kernel {name}
  .amdhsa_next_free_vgpr {vgpr}
  .amdhsa_next_free_sgpr {sgpr}
  .amdhsa_accum_offset {accum}
  .amdhsa_group_segment_fixed_size 0
  .amdhsa_kernarg_size 64
  .amdhsa_user_sgpr_count 2
  .amdhsa_user_sgpr_kernarg_segment_ptr 1
  .amdhsa_system_sgpr_workgroup_id_x 1
{extra}.end_amdhsa_kernel
"""
```

```python
import sys, re
from asmgen import Asm

NAME = "standalone__gqa_block_cached__near_ridge"

def vr(a, n=1):
    return f"v{a}" if n == 1 else f"v[{a}:{a+n-1}]"
def sr(a, n=1):
    return f"s{a}" if n == 1 else f"s[{a}:{a+n-1}]"

S_X, S_K, S_V, S_WQ, S_WO, S_OUT, S_DBG, S_WS = 4, 6, 8, 10, 12, 14, 16, 18
S_W = 20
S_H = 21; S_B = 22; S_G = 23; S_ROT = 24
S_T0 = 25; S_T1 = 26; S_T2 = 27
SRD_X, SRD_WQ, SRD_K, SRD_V, SRD_WS, SRD_WO, SRD_OUT = 28, 32, 36, 40, 44, 48, 52
S_SX = 56; S_SW = 57; S_LX = 58; S_LW = 59; S_XB = 60; S_WB = 61
S_T3 = 62; S_T4 = 63; S_T5 = 64; S_T6 = 65; S_T7 = 66
S_STAMP = 72

O_REGION = 0x100000
STAMP_REGION = 0

class K:
    def __init__(self, stamps=False):
        self.a = Asm()
        self.stamps_on = stamps
        self.nst = 0
    def __call__(self, s):
        for l in s.strip("\n").split("\n"):
            l = l.strip()
            if not l: continue
            m = re.search(r"offset:(\d+)", l)
            if m:
                lim = 65535 if l.startswith("ds_") else 4095
                assert int(m.group(1)) <= lim, l
            if l.endswith(":"): self.a(l)
            else: self.a("    " + l)
    def stamp(self):
        if not self.stamps_on: return
        r = S_STAMP + 2*self.nst
        assert r <= 98
        self.nst += 1
        self(f"s_memrealtime s[{r}:{r+1}]")
    def write_stamps(self, slot_base, nw=4):
        if not self.stamps_on: return
        self(f"""
        s_waitcnt vmcnt(0) lgkmcnt(0)
        s_mul_i32 s{S_T0}, s2, {nw}
        s_add_u32 s{S_T0}, s{S_T0}, s{S_W}
        s_lshl_b32 s{S_T0}, s{S_T0}, 6
        s_add_u32 s{S_T0}, s{S_T0}, {slot_base}
        v_mov_b32 v2, 0
        v_cmp_eq_u32 vcc, 0, v1
        s_and_saveexec_b64 s[{S_T4-1}:{S_T4}], vcc
        """)
        for i in range(self.nst):
            self(f"v_mov_b32 v3, s{S_STAMP+2*i}\nbuffer_store_dword v3, v2, s[{SRD_WS}:{SRD_WS+3}], s{S_T0} offen offset:{4*i}")
        self(f"s_mov_b64 exec, s[{S_T4-1}:{S_T4}]")

def srd(k, dst, base, size, off_sgpr=None):
    if off_sgpr is None:
        k(f"s_mov_b32 s{dst}, s{base}\ns_mov_b32 s{dst+1}, s{base+1}")
    else:
        k(f"s_add_u32 s{dst}, s{base}, s{off_sgpr}\ns_addc_u32 s{dst+1}, s{base+1}, 0")
    k(f"s_mov_b32 s{dst+2}, {size}\ns_mov_b32 s{dst+3}, 0x20000")

def load_kernargs(k):
    k(f"""
    s_load_dwordx4 s[4:7], s[0:1], 0
    s_load_dwordx4 s[8:11], s[0:1], 16
    s_load_dwordx4 s[12:15], s[0:1], 32
    s_load_dwordx4 s[16:19], s[0:1], 48
    v_lshrrev_b32 v2, 6, v0
    v_and_b32 v1, 63, v0
    v_readfirstlane_b32 s{S_W}, v2
    """)

LX = 0
LW = 40960
LK = 122880
LV = 139264
LQ = LW + 16384
LDS1 = 155648

V_LANE = 1
V_X0, V_X1 = 2, 3
V_WQ = 4
V_K0, V_V0 = 8, 9
V_XR = 10
V_WR = 14
V_QK = 18
V_QR = 22
V_QW = 26
V_VR = 27
V_T = 28
H0 = 32; H1 = 56
ACC = 80
KF = 112
QF = 176
SA = 192
PF = 208
OA = 32
OP = 64
V_T2 = 216

def phase1_setup(k, rot=True):
    k(f"""
    s_and_b32 s{S_G}, s2, 7
    s_lshr_b32 s{S_T0}, s2, 3
    s_and_b32 s{S_T0}, s{S_T0}, 3
    s_lshl_b32 s{S_H}, s{S_G}, 2
    s_add_u32 s{S_H}, s{S_H}, s{S_T0}
    s_lshr_b32 s{S_B}, s2, 5
    """)
    if rot:
        k(f"s_lshl_b32 s{S_ROT}, s{S_T0}, 1\ns_add_u32 s{S_ROT}, s{S_ROT}, s{S_B}")
    else:
        k(f"s_mov_b32 s{S_ROT}, 0")
    l = V_LANE
    k(f"""
    v_lshrrev_b32 v{V_T}, 3, v{l}                 ; r
    v_and_b32 v{V_T+1}, 7, v{l}                   ; p
    v_lshrrev_b32 v{V_T+2}, 1, v{V_T}             ; r>>1
    v_xor_b32 v{V_T+1}, v{V_T+1}, v{V_T+2}        ; p ^ (r>>1)
    v_lshlrev_b32 v{V_T+1}, 4, v{V_T+1}
    v_lshl_add_u32 v{V_X0}, v{V_T}, 10, v{V_T+1}  ; r*1024 + c8*16
    v_xor_b32 v{V_X1}, 64, v{V_X0}
    v_add_u32 v{V_X1}, 8192, v{V_X1}
    v_lshrrev_b32 v{V_T}, 4, v{l}
    v_and_b32 v{V_T+1}, 15, v{l}
    v_lshlrev_b32 v{V_T+2}, 2, v{V_T}
    v_xor_b32 v{V_T+2}, v{V_T+1}, v{V_T+2}
    v_lshlrev_b32 v{V_T+2}, 4, v{V_T+2}
    v_lshl_add_u32 v{V_WQ}, v{V_T}, 13, v{V_T+2}
    v_add_u32 v{V_WQ+1}, 0x8000, v{V_WQ}
    v_add_u32 v{V_WQ+2}, 0x10000, v{V_WQ}
    v_add_u32 v{V_WQ+3}, 0x18000, v{V_WQ}
    v_xor_b32 v{V_T+2}, v{V_T+1}, v{V_T}
    v_lshlrev_b32 v{V_T+2}, 4, v{V_T+2}
    v_lshl_add_u32 v{V_K0}, v{V_T}, 8, v{V_T+2}
    v_lshlrev_b32 v{V_T+2}, 1, v{V_T}
    v_xor_b32 v{V_T+2}, v{V_T+1}, v{V_T+2}
    v_lshlrev_b32 v{V_T+2}, 4, v{V_T+2}
    v_lshl_add_u32 v{V_V0}, v{V_T}, 8, v{V_T+2}
    """)
    k(f"""
    s_lshl_b32 s{S_XB}, s{S_W}, 14
    s_lshl_b32 s{S_WB}, s{S_W}, 17
    s_lshl_b32 s{S_LX}, s{S_W}, 11
    s_lshl_b32 s{S_LW}, s{S_W}, 12
    s_add_u32 s{S_LW}, s{S_LW}, {LW}
    """)

def phase1_srds(k):
    k(f"s_lshl_b32 s{S_T0}, s{S_B}, 16")
    srd(k, SRD_X, S_X, 65536, S_T0)
    k(f"s_lshl_b32 s{S_T0}, s{S_H}, 8")
    srd(k, SRD_WQ, S_WQ, 0x400000 - 31*256, S_T0)
    k(f"s_lshl_b32 s{S_T0}, s{S_B}, 3\ns_add_u32 s{S_T0}, s{S_T0}, s{S_G}\ns_lshl_b32 s{S_T0}, s{S_T0}, 14")
    srd(k, SRD_K, S_K, 16384, S_T0)
    srd(k, SRD_V, S_V, 16384, S_T0)
    srd(k, SRD_WS, S_WS, 0x10000000)

def chunk_offsets(k, i):
    k(f"""
    s_add_u32 s{S_T0}, s{S_ROT}, {i}
    s_and_b32 s{S_T0}, s{S_T0}, 7
    s_lshl_b32 s{S_SX}, s{S_T0}, 7
    s_add_u32 s{S_SX}, s{S_SX}, s{S_XB}
    s_lshl_b32 s{S_SW}, s{S_T0}, 19
    s_add_u32 s{S_SW}, s{S_SW}, s{S_WB}
    """)

def chunk_dma_list(i):
    slot = i % 5
    out = []
    for j in range(2):
        out.append((f"s_add_u32 m0, s{S_LX}, {LX + slot*8192 + j*1024}",
                    f"buffer_load_dwordx4 v{V_X0+j}, s[{SRD_X}:{SRD_X+3}], s{S_SX} offen lds"))
    for j in range(4):
        out.append((f"s_add_u32 m0, s{S_LW}, {slot*16384 + j*1024}",
                    f"buffer_load_dwordx4 v{V_WQ+j}, s[{SRD_WQ}:{SRD_WQ+3}], s{S_SW} offen lds"))
    return out

def kv_dma_list(which):
    out = []
    for j in range(4):
        if which == "k":
            pre = f"v_xor_b32 v{V_T+j}, {j << 6}, v{V_K0}"
            base, srdr = LK, SRD_K
        else:
            pre = f"v_xor_b32 v{V_T+j}, {(j & 1) << 7}, v{V_V0}"
            base, srdr = LV, SRD_V
        out.append((pre + f"\ns_add_u32 m0, s{S_T2}, {base}",
                    f"buffer_load_dwordx4 v{V_T+j}, s[{srdr}:{srdr+3}], s{S_T2} offen offset:{j*1024} lds"))
    return out

def phase1_readaddrs(k):
    l = V_LANE
    k(f"""
    s_lshr_b32 s{S_T3}, s{S_W}, 1          ; mi
    s_and_b32 s{S_T4}, s{S_W}, 1           ; ni
    v_and_b32 v{V_T}, 31, v{l}
    v_lshrrev_b32 v{V_T+1}, 5, v{l}        ; hi
    v_bfe_u32 v{V_T+2}, v{l}, 1, 3         ; (m>>1)&7
    v_xor_b32 v{V_T+2}, v{V_T+2}, v{V_T+1}
    v_lshlrev_b32 v{V_T+2}, 4, v{V_T+2}
    v_lshl_add_u32 v{V_T+2}, v{V_T}, 7, v{V_T+2}
    s_lshl_b32 s{S_T5}, s{S_T3}, 12        ; mi*32*128
    v_add_u32 v{V_XR}, s{S_T5}, v{V_T+2}
    v_xor_b32 v{V_XR+1}, 32, v{V_XR}
    v_xor_b32 v{V_XR+2}, 64, v{V_XR}
    v_xor_b32 v{V_XR+3}, 96, v{V_XR}
    v_bfe_u32 v{V_T}, v{l}, 2, 2           ; i>>2
    v_bfe_u32 v{V_T+2}, v{l}, 4, 1         ; G&1
    v_bfe_u32 v{V_T+3}, v{l}, 1, 1         ; (i&3)>>1
    v_lshl_add_u32 v{V_T+2}, v{V_T+2}, 1, v{V_T+3}
    s_lshl_b32 s{S_T5}, s{S_T4}, 3
    v_add_u32 v{V_T+2}, s{S_T5}, v{V_T+2}  ; chunk16 (t=0)
    v_lshlrev_b32 v{V_T+3}, 2, v{V_T}
    v_xor_b32 v{V_T+2}, v{V_T+2}, v{V_T+3}
    v_lshlrev_b32 v{V_T+2}, 4, v{V_T+2}
    v_lshl_add_u32 v{V_T}, v{V_T+1}, 3, v{V_T}
    v_lshl_add_u32 v{V_T+2}, v{V_T}, 8, v{V_T+2}
    v_and_b32 v{V_T+3}, 1, v{l}
    v_lshl_add_u32 v{V_T+2}, v{V_T+3}, 3, v{V_T+2}
    v_add_u32 v{V_WR}, {LW}, v{V_T+2}
    v_xor_b32 v{V_WR+1}, 64, v{V_WR}
    v_add_u32 v{V_WR+2}, 0x10000, v{V_WR}
    v_add_u32 v{V_WR+3}, 0x10000, v{V_WR+1}
    v_and_b32 v{V_T}, 15, v{l}
    v_lshrrev_b32 v{V_T+1}, 4, v{l}
    v_xor_b32 v{V_T+2}, v{V_T}, v{V_T+1}
    v_lshlrev_b32 v{V_T+2}, 4, v{V_T+2}
    v_lshl_add_u32 v{V_T+2}, v{V_T}, 8, v{V_T+2}
    v_add_u32 v{V_QK}, {LK}, v{V_T+2}
    v_xor_b32 v{V_QK+1}, 64, v{V_QK}
    v_xor_b32 v{V_QK+2}, 128, v{V_QK}
    v_xor_b32 v{V_QK+3}, 192, v{V_QK}
    s_lshl_b32 s{S_T5}, s{S_W}, 12
    s_add_u32 s{S_T5}, s{S_T5}, {LQ}
    v_add_u32 v{V_QR}, s{S_T5}, v{V_T+2}
    v_xor_b32 v{V_QR+1}, 64, v{V_QR}
    v_xor_b32 v{V_QR+2}, 128, v{V_QR}
    v_xor_b32 v{V_QR+3}, 192, v{V_QR}
    v_and_b32 v{V_T+2}, 31, v{l}
    v_lshrrev_b32 v{V_T+3}, 5, v{l}
    s_lshl_b32 s{S_T5}, s{S_T4}, 3
    v_xor_b32 v{V_T}, s{S_T5}, v{V_T}      ; (m&15) ^ 8ni
    v_lshlrev_b32 v{V_T}, 4, v{V_T}
    v_lshl_add_u32 v{V_T}, v{V_T+2}, 8, v{V_T}
    v_lshl_add_u32 v{V_T}, v{V_T+3}, 3, v{V_T}
    s_lshl_b32 s{S_T5}, s{S_T3}, 13
    s_add_u32 s{S_T5}, s{S_T5}, {LQ}
    v_add_u32 v{V_QW}, s{S_T5}, v{V_T}
    v_bfe_u32 v{V_T}, v{l}, 2, 2           ; i>>2
    v_lshl_add_u32 v{V_T+2}, v{V_T+1}, 2, v{V_T}   ; row = 4q + (i>>2)
    v_and_b32 v{V_T+3}, 7, v{V_T+2}
    v_lshlrev_b32 v{V_T+3}, 1, v{V_T+3}
    v_bfe_u32 v{V_T}, v{l}, 1, 1
    v_xor_b32 v{V_T+3}, v{V_T+3}, v{V_T}
    v_lshlrev_b32 v{V_T+3}, 4, v{V_T+3}
    v_lshl_add_u32 v{V_T+2}, v{V_T+2}, 8, v{V_T+3}
    v_and_b32 v{V_T}, 1, v{l}
    v_lshl_add_u32 v{V_T+2}, v{V_T}, 3, v{V_T+2}
    v_add_u32 v{V_VR}, {LV}, v{V_T+2}
    s_lshl_b32 s{S_T2}, s{S_W}, 12
    """)

def half_reads(i, half):
    slot = i % 5
    base = H0 if half == 0 else H1
    res = []
    for ss in range(2):
        s = 2*half + ss
        fb = base + ss*12
        l = [f"ds_read_b128 v[{fb}:{fb+3}], v{V_XR+s} offset:{LX + slot*8192}"]
        for t in range(2):
            if slot < 4: ar, off = V_WR + t, slot*16384
            else: ar, off = V_WR + 2 + t, 0
            for e in range(2):
                r = fb + 4 + 4*t + 2*e
                l.append(f"ds_read_b64_tr_b16 v[{r}:{r+1}], v{ar} offset:{off + (16*s + 4*e)*256}")
        res.append(l)
    return res

def half_mfma(half, first=False):
    base = H0 if half == 0 else H1
    res = []
    for ss in range(2):
        fb = base + ss*12
        for t in range(2):
            acc = f"v[{ACC+16*t}:{ACC+16*t+15}]"
            c = "0" if (first and ss == 0) else acc
            res.append(f"v_mfma_f32_32x32x16_bf16 {acc}, v[{fb+4+4*t}:{fb+7+4*t}], v[{fb}:{fb+3}], {c}")
    return res

def interleave(k, mf, dma):
    dma = list(dma)
    for m in mf:
        if dma:
            pre, ld = dma[0]
            k(pre)
        k(m)
        if dma:
            k(ld); dma.pop(0)
    return dma

def phase1_body(k):
    for i in range(4):
        chunk_offsets(k, i)
        for pre, ld in chunk_dma_list(i):
            k(pre + "\ns_nop 0\n" + ld)
    phase1_readaddrs(k)
    k.stamp()
    waits = [18, 18, 18, 18, 18, 16, 14, 4]
    for i in range(8):
        k(f"s_waitcnt vmcnt({waits[i]})")
        if i > 0: k("s_waitcnt lgkmcnt(0)")
        k("s_barrier")
        if i in (0, 3): k.stamp()
        dma = []
        if i < 4:
            chunk_offsets(k, i+4)
            dma = chunk_dma_list(i+4)
        elif i == 4: dma = kv_dma_list("k")
        elif i == 5: dma = kv_dma_list("v")
        r0 = half_reads(i, 0)
        for ins in r0[0] + r0[1]: k(ins)
        if i > 0:
            dma = interleave(k, half_mfma(1), dma)
        r1 = half_reads(i, 1)
        m0 = half_mfma(0, first=(i == 0))
        k("s_waitcnt lgkmcnt(5)")
        dma = interleave(k, m0[0:2], dma)
        for ins in r1[0]: k(ins)
        k("s_waitcnt lgkmcnt(5)")
        dma = interleave(k, m0[2:4], dma)
        for ins in r1[1]: k(ins)
        for pre, ld in dma:
            k(pre + "\ns_nop 0\n" + ld)
    kreads = []
    for s in range(4):
        for t in range(4):
            r = KF + (t*4 + s)*4
            kreads.append(f"ds_read_b128 v[{r}:{r+3}], v{V_QK+s} offset:{t*4096}")
    m1 = half_mfma(1)
    for ins in kreads[:4]: k(ins)
    k("s_waitcnt lgkmcnt(9)")
    k(m1[0]); k(m1[1])
    k("s_waitcnt lgkmcnt(4)")
    k(m1[2]); k(m1[3])
    for ins in kreads[4:12]: k(ins)
    k.stamp()
    k("s_nop 3")
    for t in range(2):
        for j in range(4):
            a = ACC + 16*t + 4*j
            d = V_T2 + 2*((t*4+j) % 4)
            k(f"v_cvt_pk_bf16_f32 v{d}, v{a}, v{a+1}\nv_cvt_pk_bf16_f32 v{d+1}, v{a+2}, v{a+3}")
            k(f"v_xor_b32 v{V_T + (j % 4)}, {(4*t+j) << 4}, v{V_QW}")
            k(f"ds_write_b64 v{V_T + (j % 4)}, v[{d}:{d+1}]")
    for ins in kreads[12:16]: k(ins)
    k("s_waitcnt vmcnt(0) lgkmcnt(0)")
    k("s_barrier")
    k.stamp()
    for s in range(4):
        k(f"ds_read_b128 v[{QF+4*s}:{QF+4*s+3}], v{V_QR+s}")
    for s in range(4):
        k(f"s_waitcnt lgkmcnt({3-s})")
        for t in range(4):
            acc = f"v[{SA+4*t}:{SA+4*t+3}]"
            c = "0" if s == 0 else acc
            r = KF + (t*4 + s)*4
            k(f"v_mfma_f32_16x16x32_bf16 {acc}, v[{r}:{r+3}], v[{QF+4*s}:{QF+4*s+3}], {c}")
    vreads = []
    for u in range(8):
        for s in range(2):
            for e in range(2):
                r = KF + (u*2 + s)*4 + 2*e
                vreads.append((u, f"ds_read_b64_tr_b16 v[{r}:{r+1}], v{V_T2 + 8 + (u % 8)} offset:{(32*s + 16*e)*256}"))
    for u in range(8):
        k(f"v_xor_b32 v{V_T2+8+u}, {u << 5}, v{V_VR}")
    for _, ins in vreads[:12]: k(ins)
    M = V_T; M2 = V_T+1; SUM = V_T+2; SUM2 = V_T+3
    k(f"v_max3_f32 v{M}, v{SA}, v{SA+1}, v{SA+2}")
    for i in range(3, 15, 2):
        k(f"v_max3_f32 v{M}, v{M}, v{SA+i}, v{SA+i+1}")
    k(f"v_max_f32 v{M}, v{M}, v{SA+15}")
    k(f"""
    v_mov_b32 v{M2}, v{M}
    s_nop 1
    v_permlane32_swap_b32 v{M}, v{M2}
    s_nop 1
    v_max_f32 v{M}, v{M}, v{M2}
    v_mov_b32 v{M2}, v{M}
    s_nop 1
    v_permlane16_swap_b32 v{M}, v{M2}
    s_nop 1
    v_max_f32 v{M}, v{M}, v{M2}
    s_mov_b32 s{S_T0}, 0x3e0293ee
    v_mul_f32 v{M}, s{S_T0}, v{M}
    """)
    for i in range(16):
        k(f"v_fma_f32 v{SA+i}, v{SA+i}, s{S_T0}, -v{M}")
    for i in range(16):
        k(f"v_exp_f32 v{SA+i}, v{SA+i}")
        if i >= 4 and i < 16 and (12 + (i-4)) < 24:
            k(vreads[12 + (i-4)][1])
    k(f"v_add_f32 v{SUM}, v{SA}, v{SA+1}\nv_add_f32 v{SUM2}, v{SA+2}, v{SA+3}")
    for i in range(4, 16, 2):
        k(f"v_add_f32 v{SUM}, v{SUM}, v{SA+i}\nv_add_f32 v{SUM2}, v{SUM2}, v{SA+i+1}")
    k(f"v_add_f32 v{SUM}, v{SUM}, v{SUM2}")
    k(f"""
    v_mov_b32 v{SUM2}, v{SUM}
    s_nop 1
    v_permlane32_swap_b32 v{SUM}, v{SUM2}
    s_nop 1
    v_add_f32 v{SUM}, v{SUM}, v{SUM2}
    v_mov_b32 v{SUM2}, v{SUM}
    s_nop 1
    v_permlane16_swap_b32 v{SUM}, v{SUM2}
    s_nop 1
    v_add_f32 v{SUM}, v{SUM}, v{SUM2}
    v_rcp_f32 v{SUM}, v{SUM}
    """)
    for _, ins in vreads[24:32]: k(ins)
    for i in range(16):
        k(f"v_mul_f32 v{SA+i}, v{SA+i}, v{SUM}")
    for s in range(2):
        for j in range(2):
            a = SA + 4*(2*s + j)
            k(f"v_cvt_pk_bf16_f32 v{PF+4*s+2*j}, v{a}, v{a+1}\nv_cvt_pk_bf16_f32 v{PF+4*s+2*j+1}, v{a+2}, v{a+3}")
    k("s_waitcnt lgkmcnt(0)")
    k.stamp()
    for s in range(2):
        for u in range(8):
            acc = f"v[{OA+4*u}:{OA+4*u+3}]"
            c = "0" if s == 0 else acc
            r = KF + (u*2 + s)*4
            k(f"v_mfma_f32_16x16x32_bf16 {acc}, v[{r}:{r+3}], v[{PF+4*s}:{PF+4*s+3}], {c}")
    k(f"""
    s_lshl_b32 s{S_T0}, s{S_B}, 1
    s_lshr_b32 s{S_T1}, s{S_W}, 1
    s_add_u32 s{S_T0}, s{S_T0}, s{S_T1}
    s_lshl_b32 s{S_T0}, s{S_T0}, 5
    s_add_u32 s{S_T0}, s{S_T0}, s{S_H}
    s_lshl_b32 s{S_T0}, s{S_T0}, 13
    s_and_b32 s{S_T1}, s{S_W}, 1
    s_lshl_b32 s{S_T1}, s{S_T1}, 10
    s_add_u32 s{S_T0}, s{S_T0}, s{S_T1}
    s_add_u32 s{S_T0}, s{S_T0}, {O_REGION}
    s_add_u32 s{S_T1}, s{S_T0}, 4096
    v_lshlrev_b32 v{V_T}, 4, v{V_LANE}
    """)

def phase1_store(k, aux=""):
    for v in range(4):
        for j in range(2):
            a = OA + 4*(2*v + j)
            d = OP + 4*v + 2*j
            k(f"v_cvt_pk_bf16_f32 v{d}, v{a}, v{a+1}\nv_cvt_pk_bf16_f32 v{d+1}, v{a+2}, v{a+3}")
        so = S_T0 if v < 2 else S_T1
        k(f"buffer_store_dwordx4 v[{OP+4*v}:{OP+4*v+3}], v{V_T}, s[{SRD_WS}:{SRD_WS+3}], s{so} offen offset:{(v%2)*2048} {aux}")

P2_VWO = 2
P2_VR = 3
P2_VO = 5
P2_T = 6
P2_ACC = 12
P2_AF = 28
P2_OF = 64
S_N0 = 21; S_MB = 22

def phase2_setup(k):
    k(f"""
    s_and_b32 s{S_T0}, s2, 7
    s_lshr_b32 s{S_T1}, s{S_T0}, 1          ; t
    s_and_b32 s{S_T0}, s{S_T0}, 1           ; ch
    s_lshr_b32 s{S_T2}, s2, 3               ; idx
    s_and_b32 s{S_MB}, s{S_T2}, 3
    s_lshl_b32 s{S_T1}, s{S_T1}, 2
    s_add_u32 s{S_MB}, s{S_MB}, s{S_T1}
    s_lshr_b32 s{S_T2}, s{S_T2}, 2
    s_lshl_b32 s{S_T0}, s{S_T0}, 3
    s_add_u32 s{S_N0}, s{S_T0}, s{S_T2}     ; nb
    """)
    l = V_LANE
    k(f"""
    v_lshrrev_b32 v{P2_T}, 2, v{l}
    v_and_b32 v{P2_T+1}, 3, v{l}
    v_bfe_u32 v{P2_T+2}, v{l}, 4, 1
    v_lshlrev_b32 v{P2_T+2}, 1, v{P2_T+2}
    v_xor_b32 v{P2_T+1}, v{P2_T+1}, v{P2_T+2}
    v_lshlrev_b32 v{P2_T+1}, 4, v{P2_T+1}
    v_lshl_add_u32 v{P2_VWO}, v{P2_T}, 10, v{P2_T+1}
    v_lshrrev_b32 v{P2_T}, 4, v{l}
    v_bfe_u32 v{P2_T+1}, v{l}, 2, 2
    v_lshl_add_u32 v{P2_T+1}, v{P2_T}, 2, v{P2_T+1}     ; row
    v_bfe_u32 v{P2_T+2}, v{l}, 1, 1
    v_and_b32 v{P2_T+3}, 1, v{P2_T}
    v_lshlrev_b32 v{P2_T+3}, 1, v{P2_T+3}
    v_xor_b32 v{P2_T+2}, v{P2_T+2}, v{P2_T+3}
    v_lshlrev_b32 v{P2_T+2}, 4, v{P2_T+2}
    v_lshl_add_u32 v{P2_T+1}, v{P2_T+1}, 6, v{P2_T+2}
    v_and_b32 v{P2_T+2}, 1, v{l}
    v_lshl_add_u32 v{P2_T+1}, v{P2_T+2}, 3, v{P2_T+1}
    s_lshl_b32 s{S_LW}, s{S_W}, 15
    v_add_u32 v{P2_VR}, s{S_LW}, v{P2_T+1}
    v_xor_b32 v{P2_VR+1}, 32, v{P2_VR}
    v_lshlrev_b32 v{P2_VO}, 4, v{l}
    """)

def phase2_srds(k):
    k(f"s_lshl_b32 s{S_T0}, s{S_N0}, 6")
    srd(k, SRD_WO, S_WO, 0x400000 - 15*64, S_T0)
    srd(k, SRD_WS, S_WS, 0x10000000)
    srd(k, SRD_OUT, S_OUT, 0x80000)
    k(f"""
    s_lshl_b32 s{S_SW}, s{S_W}, 20
    s_lshl_b32 s{S_SX}, s{S_MB}, 18
    s_lshl_b32 s{S_T0}, s{S_W}, 16
    s_add_u32 s{S_SX}, s{S_SX}, s{S_T0}
    s_add_u32 s{S_SX}, s{S_SX}, {O_REGION}
    """)

def p2_issue(k, hh, ldaux=""):
    slot = hh % 4
    for j in range(8):
        k(f"s_add_u32 m0, s{S_LW}, {slot*8192 + j*1024}")
        k(f"s_add_u32 s{S_T0}, s{S_SW}, {(hh*128 + 16*j)*1024}")
        k(f"buffer_load_dwordx4 v{P2_VWO}, s[{SRD_WO}:{SRD_WO+3}], s{S_T0} offen lds")
    k(f"s_add_u32 s{S_T1}, s{S_SX}, {hh*8192}")
    k(f"s_add_u32 s{S_T2}, s{S_T1}, 4096")
    for j in range(8):
        r = P2_OF + slot*32 + 4*j
        so = S_T1 if j < 4 else S_T2
        k(f"buffer_load_dwordx4 v[{r}:{r+3}], v{P2_VO}, s[{SRD_WS}:{SRD_WS+3}], s{so} offen offset:{(j%4)*1024} {ldaux}")

def phase2_body(k, ldaux=""):
    for hh in range(3): p2_issue(k, hh, ldaux)
    k.stamp()
    for hh in range(8):
        slot = hh % 4
        nlater = min(2, 7 - hh)
        k(f"s_waitcnt vmcnt({16*nlater})")
        if hh == 0: k.stamp()
        for v in range(4):
            for u in range(2):
                for e in range(2):
                    r = P2_AF + (v*2 + u)*4 + 2*e
                    k(f"ds_read_b64_tr_b16 v[{r}:{r+1}], v{P2_VR+u} offset:{slot*8192 + (32*v + 16*e)*64}")
            if v == 2: pass
        for v in range(4):
            k(f"s_waitcnt lgkmcnt({12 - 4*v})")
            for u in range(2):
                for mg in range(2):
                    acc = f"v[{P2_ACC+(u*2+mg)*4}:{P2_ACC+(u*2+mg)*4+3}]"
                    c = "0" if (hh == 0 and v == 0) else acc
                    a = P2_AF + (v*2 + u)*4
                    b = P2_OF + slot*32 + (v*2 + mg)*4
                    k(f"v_mfma_f32_16x16x32_bf16 {acc}, v[{a}:{a+3}], v[{b}:{b+3}], {c}")
        if hh + 3 < 8: p2_issue(k, hh + 3, ldaux)
    k.stamp()
    k(f"""
    s_barrier
    s_lshl_b32 s{S_T0}, s{S_W}, 12
    v_add_u32 v{P2_T}, s{S_T0}, v{P2_VO}
    s_nop 4
    """)
    for tl in range(4):
        k(f"ds_write_b128 v{P2_T}, v[{P2_ACC+4*tl}:{P2_ACC+4*tl+3}] offset:{tl*1024}")
    k(f"""
    s_waitcnt lgkmcnt(0)
    s_barrier
    s_lshl_b32 s{S_T0}, s{S_W}, 10
    v_add_u32 v{P2_T}, s{S_T0}, v{P2_VO}
    """)
    for ww in range(4):
        k(f"ds_read_b128 v[{P2_AF+4*ww}:{P2_AF+4*ww+3}], v{P2_T} offset:{ww*4096}")
    k(f"""
    s_and_b32 s{S_T0}, s{S_W}, 1
    s_lshl_b32 s{S_T0}, s{S_T0}, 4
    s_lshl_b32 s{S_T1}, s{S_MB}, 5
    s_add_u32 s{S_T0}, s{S_T0}, s{S_T1}
    s_lshl_b32 s{S_T0}, s{S_T0}, 10
    s_lshr_b32 s{S_T1}, s{S_W}, 1
    s_lshl_b32 s{S_T1}, s{S_T1}, 5
    s_add_u32 s{S_T0}, s{S_T0}, s{S_T1}
    s_lshl_b32 s{S_T1}, s{S_N0}, 6
    s_add_u32 s{S_T0}, s{S_T0}, s{S_T1}
    v_and_b32 v{P2_T+1}, 15, v{V_LANE}
    v_lshrrev_b32 v{P2_T+2}, 4, v{V_LANE}
    v_lshlrev_b32 v{P2_T+2}, 3, v{P2_T+2}
    v_lshl_add_u32 v{P2_T+1}, v{P2_T+1}, 10, v{P2_T+2}
    s_waitcnt lgkmcnt(0)
    """)
    A = P2_AF
    for r in range(4):
        k(f"v_add_f32 v{A+r}, v{A+r}, v{A+4+r}\nv_add_f32 v{A+8+r}, v{A+8+r}, v{A+12+r}")
    for r in range(4):
        k(f"v_add_f32 v{A+r}, v{A+r}, v{A+8+r}")
    k(f"""
    v_cvt_pk_bf16_f32 v{A+4}, v{A}, v{A+1}
    v_cvt_pk_bf16_f32 v{A+5}, v{A+2}, v{A+3}
    buffer_store_dwordx2 v[{A+4}:{A+5}], v{P2_T+1}, s[{SRD_OUT}:{SRD_OUT+3}], s{S_T0} offen
    """)

def descriptor(name, vgpr, sgpr=102):
    acc = (vgpr + 3)//4*4
    return f""".amdhsa_kernel {name}
  .amdhsa_next_free_vgpr {vgpr}
  .amdhsa_next_free_sgpr {sgpr}
  .amdhsa_accum_offset {acc}
  .amdhsa_group_segment_fixed_size 0
  .amdhsa_kernarg_size 64
  .amdhsa_user_sgpr_count 2
  .amdhsa_user_sgpr_kernarg_segment_ptr 1
  .amdhsa_system_sgpr_workgroup_id_x 1
.end_amdhsa_kernel
"""

HEADER_COMMENT = """; GQA block (Q projection, attention over a cached K/V block, output projection), bf16, gfx950.
"""

def gen_two_kernels(stamps=False, rot=True):
    out = HEADER_COMMENT
    out += "; @launch kernel=gqa_p1_kernel grid=(256,1,1) block=(256,1,1) lds=%d\n" % LDS1
    out += "; @launch kernel=gqa_p2_kernel grid=(256,1,1) block=(256,1,1) lds=131072\n"
    out += '.amdgcn_target "amdgcn-amd-amdhsa--gfx950"\n.text\n'
    k = K(stamps)
    k.a(".globl gqa_p1_kernel\n.p2align 8\n.type gqa_p1_kernel,@function\ngqa_p1_kernel:")
    k.stamp()
    k("s_cmp_ge_u32 s2, 256\ns_cbranch_scc1 L1_done")
    load_kernargs(k)
    phase1_setup(k, rot)
    k("s_waitcnt lgkmcnt(0)")
    phase1_srds(k)
    phase1_body(k)
    k("s_nop 4")
    phase1_store(k)
    k.stamp()
    k.write_stamps(STAMP_REGION)
    k("L1_done:\ns_endpgm")
    out += k.a.text()
    n1 = k.nst
    k = K(stamps)
    k.a(".globl gqa_p2_kernel\n.p2align 8\n.type gqa_p2_kernel,@function\ngqa_p2_kernel:")
    k.stamp()
    k("s_cmp_ge_u32 s2, 256\ns_cbranch_scc1 L2_done")
    load_kernargs(k)
    phase2_setup(k)
    k("s_waitcnt lgkmcnt(0)")
    phase2_srds(k)
    phase2_body(k)
    k.stamp()
    k.write_stamps(STAMP_REGION + 65536)
    k("L2_done:\ns_endpgm")
    out += k.a.text()
    out += '.section .rodata,"a"\n.p2align 6\n'
    out += descriptor("gqa_p1_kernel", 232)
    out += ".p2align 6\n"
    out += descriptor("gqa_p2_kernel", 192)
    return out, (n1, k.nst)

if __name__ == "__main__":
    txt, _ = gen_two_kernels()
    open(sys.argv[1] if len(sys.argv) > 1 else "cdna_kernels/%s.s" % NAME, "w").write(txt)
```

```python
import sys, re
from asmgen import Asm

NAME = "standalone__gqa_block_cached__near_ridge"
KNAME = NAME + "_kernel"

S_X, S_K, S_V, S_WQ, S_WO, S_OUT, S_DBG, S_WS = 4, 6, 8, 10, 12, 14, 16, 18
S_W = 20; S_H = 21; S_B = 22; S_G = 23; S_ROT = 24
S_T0 = 25; S_T1 = 26; S_T2 = 27
SRD_X, SRD_WQ, SRD_K, SRD_V, SRD_WS, SRD_WO, SRD_OUT = 28, 32, 36, 40, 44, 48, 52
S_SX = 56; S_SW = 57; S_LX = 58; S_LW = 59; S_XB = 60; S_WB = 61
S_T3 = 62; S_T4 = 63; S_T5 = 64; S_T6 = 65
S_HH = 66; S_NONCE = 67; S_KQ = 68; S_NB = 69; S_KVB = 70; S_CNT = 71
S_STAMP = 72
S_SAVE = 100

WS_NONCE = 0x10000
WS_FLAG1 = 0x20000
WS_FLAG2 = 0x30000
WS_O = 0x100000
WS_P = 0x600000
SPIN_MAX = 40000

LX = 0; LW = 40960; LV = 131072; LK = 147456
LQ = LW + 16384
LRED = LK
LDS_TOTAL = 163840

V_LANE = 1
V_X0, V_X1 = 2, 3
V_WQ = 4
V_K0, V_V0 = 8, 9
V_XR = 10
V_WR = 14
V_QK = 18
V_QR = 22
V_QW = 26
V_VR = 27
V_T = 28
FR = 32
ACC = 80
KF = 112
QF = 176
SA = 192
PF = 208
V_T2 = 216
V_L16 = 232
V_DUMMY = 233
V_C = 234
V_MN = 236
V_ONE = 240
VF = 32
OA = 112
OS = 144
OP = 148
P_WD = 2
P_WR = 4
P_T = 8
P_ACC = 16
P_AF = 48
P_OF = 96
NVGPR = 244

class K:
    def __init__(self, stop_at=None):
        self.a = Asm(); self.nst = 0; self.stop_at = stop_at; self.lab = 0
    def __call__(self, s):
        for l in s.strip("\n").split("\n"):
            l = l.strip()
            if not l: continue
            m = re.search(r"offset:(\d+)", l)
            if m:
                lim = 65535 if l.startswith("ds_") else 4095
                assert int(m.group(1)) <= lim, l
            self.a(l if l.endswith(":") else "    " + l)
    def label(self, p):
        self.lab += 1
        return f"L_{p}_{self.lab}"
    def stamp(self):
        r = S_STAMP + 2*self.nst; self.nst += 1
        self(f"s_memrealtime s[{r}:{r+1}]")
    def cp(self, name):
        if self.stop_at != name: return
        self.stamp()
        self(f"""
        s_waitcnt lgkmcnt(0)
        s_lshl_b32 s{S_T0}, s2, 2
        s_add_u32 s{S_T0}, s{S_T0}, s{S_W}
        s_lshl_b32 s{S_T0}, s{S_T0}, 6
        v_mov_b32 v2, 0
        v_cmp_eq_u32 vcc, 0, v1
        s_and_saveexec_b64 s[{S_SAVE}:{S_SAVE+1}], vcc
        """)
        for i in range(self.nst):
            self(f"v_mov_b32 v3, s{S_STAMP+2*i}\nbuffer_store_dword v3, v2, s[{SRD_WS}:{SRD_WS+3}], s{S_T0} offen offset:{4*i}")
        if name != "end": self("s_endpgm")

def srd(k, dst, base, size, off_sgpr=None):
    if off_sgpr is None:
        k(f"s_mov_b32 s{dst}, s{base}\ns_mov_b32 s{dst+1}, s{base+1}")
    else:
        k(f"s_add_u32 s{dst}, s{base}, s{off_sgpr}\ns_addc_u32 s{dst+1}, s{base+1}, 0")
    k(f"s_mov_b32 s{dst+2}, {size}\ns_mov_b32 s{dst+3}, 0x20000")

def R4(b): return f"v[{b}:{b+3}]"
def SR(b): return f"s[{b}:{b+3}]"

def setup(k, opt):
    l = V_LANE
    k(f"""
    s_load_dwordx4 s[4:7], s[0:1], 0
    s_load_dwordx4 s[8:11], s[0:1], 16
    s_load_dwordx4 s[12:15], s[0:1], 32
    s_load_dwordx4 s[16:19], s[0:1], 48
    v_lshrrev_b32 v2, 6, v0
    v_and_b32 v1, 63, v0
    v_readfirstlane_b32 s{S_W}, v2
    s_and_b32 s{S_G}, s2, 7
    s_lshr_b32 s{S_HH}, s2, 3
    s_and_b32 s{S_HH}, s{S_HH}, 3
    s_lshl_b32 s{S_H}, s{S_G}, 2
    s_add_u32 s{S_H}, s{S_H}, s{S_HH}
    s_lshr_b32 s{S_B}, s2, 5
    s_lshr_b32 s{S_KQ}, s{S_G}, 1
    s_and_b32 s{S_NB}, s{S_G}, 1
    s_lshl_b32 s{S_NB}, s{S_NB}, 2
    s_add_u32 s{S_NB}, s{S_NB}, s{S_HH}
    """)
    if opt.get("rot", True):
        k(f"s_lshl_b32 s{S_ROT}, s{S_HH}, 1\ns_add_u32 s{S_ROT}, s{S_ROT}, s{S_B}")
    else:
        k(f"s_mov_b32 s{S_ROT}, 0")
    k(f"""
    v_lshrrev_b32 v{V_T}, 3, v{l}
    v_and_b32 v{V_T+1}, 7, v{l}
    v_lshrrev_b32 v{V_T+2}, 1, v{V_T}
    v_xor_b32 v{V_T+1}, v{V_T+1}, v{V_T+2}
    v_lshlrev_b32 v{V_T+1}, 4, v{V_T+1}
    v_lshl_add_u32 v{V_X0}, v{V_T}, 10, v{V_T+1}
    v_xor_b32 v{V_X1}, 64, v{V_X0}
    v_add_u32 v{V_X1}, 8192, v{V_X1}
    v_lshrrev_b32 v{V_T}, 4, v{l}
    v_and_b32 v{V_T+1}, 15, v{l}
    v_lshlrev_b32 v{V_T+2}, 2, v{V_T}
    v_xor_b32 v{V_T+2}, v{V_T+1}, v{V_T+2}
    v_lshlrev_b32 v{V_T+2}, 4, v{V_T+2}
    v_lshl_add_u32 v{V_WQ}, v{V_T}, 13, v{V_T+2}
    v_add_u32 v{V_WQ+1}, 0x8000, v{V_WQ}
    v_add_u32 v{V_WQ+2}, 0x10000, v{V_WQ}
    v_add_u32 v{V_WQ+3}, 0x18000, v{V_WQ}
    s_lshl_b32 s{S_XB}, s{S_W}, 14
    s_lshl_b32 s{S_WB}, s{S_W}, 17
    s_lshl_b32 s{S_LX}, s{S_W}, 11
    s_lshl_b32 s{S_LW}, s{S_W}, 12
    s_mov_b32 s{S_KVB}, s{S_LW}
    s_add_u32 s{S_LW}, s{S_LW}, {LW}
    s_waitcnt lgkmcnt(0)
    s_lshl_b32 s{S_T0}, s{S_B}, 16
    """)
    srd(k, SRD_X, S_X, 65536, S_T0)
    k(f"s_lshl_b32 s{S_T0}, s{S_H}, 8")
    srd(k, SRD_WQ, S_WQ, 0x400000 - 31*256, S_T0)

def setup2(k, opt):
    l = V_LANE
    k(f"s_lshl_b32 s{S_T0}, s{S_B}, 3\ns_add_u32 s{S_T0}, s{S_T0}, s{S_G}\ns_lshl_b32 s{S_T0}, s{S_T0}, 14")
    srd(k, SRD_K, S_K, 16384, S_T0)
    srd(k, SRD_V, S_V, 16384, S_T0)
    srd(k, SRD_WS, S_WS, 0x10000000)
    k(f"s_lshl_b32 s{S_T0}, s{S_KQ}, 20\ns_lshl_b32 s{S_T1}, s{S_NB}, 7\ns_add_u32 s{S_T0}, s{S_T0}, s{S_T1}")
    srd(k, SRD_WO, S_WO, 1023*1024 + 128, S_T0)
    srd(k, SRD_OUT, S_OUT, 0x80000)
    k(f"""
    s_lshl_b32 s{S_T0}, s{S_B}, 7
    s_add_u32 s{S_T0}, s{S_T0}, {WS_NONCE}
    s_load_dword s{S_NONCE}, s[{S_WS}:{S_WS+1}], s{S_T0}
    """)
    k(f"""
    v_lshrrev_b32 v{V_T}, 4, v{l}
    v_and_b32 v{V_T+1}, 15, v{l}
    v_xor_b32 v{V_T+2}, v{V_T+1}, v{V_T}
    v_lshlrev_b32 v{V_T+2}, 4, v{V_T+2}
    v_lshl_add_u32 v{V_K0}, v{V_T}, 8, v{V_T+2}
    v_lshlrev_b32 v{V_T+2}, 1, v{V_T}
    v_xor_b32 v{V_T+2}, v{V_T+1}, v{V_T+2}
    v_lshlrev_b32 v{V_T+2}, 4, v{V_T+2}
    v_lshl_add_u32 v{V_V0}, v{V_T}, 8, v{V_T+2}
    v_lshlrev_b32 v{V_L16}, 4, v{l}
    """)

def touch(k, opt):
    if not opt.get("touch", True): return 0
    l = V_LANE
    la, lb, lc, ld = (k.label("t") for _ in range(4))
    k(f"""
    v_and_b32 v{V_T}, 31, v{l}
    v_lshlrev_b32 v{V_T}, 7, v{V_T}
    s_lshl_b32 s{S_T0}, s{S_HH}, 12
    v_lshlrev_b32 v{V_T+1}, 10, v{l}
    s_lshl_b32 s{S_T1}, s{S_B}, 17
    s_and_b32 s{S_T2}, s{S_W}, 1
    s_lshl_b32 s{S_T2}, s{S_T2}, 16
    s_add_u32 s{S_T1}, s{S_T1}, s{S_T2}
    s_cmp_eq_u32 s{S_W}, 0
    s_cbranch_scc1 {la}
    s_cmp_eq_u32 s{S_W}, 1
    s_cbranch_scc1 {lb}
    buffer_load_dword v{V_DUMMY}, v{V_T+1}, {SR(SRD_WO)}, s{S_T1} offen
    s_branch {lc}
    {la}:
    buffer_load_dword v{V_DUMMY}, v{V_T}, {SR(SRD_K)}, s{S_T0} offen
    s_branch {lc}
    {lb}:
    buffer_load_dword v{V_DUMMY}, v{V_T}, {SR(SRD_V)}, s{S_T0} offen
    {lc}:
    """)
    return 1

def chunk_offsets(k, i):
    k(f"""
    s_add_u32 s{S_T0}, s{S_ROT}, {i}
    s_and_b32 s{S_T0}, s{S_T0}, 7
    s_lshl_b32 s{S_SX}, s{S_T0}, 7
    s_add_u32 s{S_SX}, s{S_SX}, s{S_XB}
    s_lshl_b32 s{S_SW}, s{S_T0}, 19
    s_add_u32 s{S_SW}, s{S_SW}, s{S_WB}
    """)

def chunk_dma(i):
    slot = i % 5
    out = []
    for j in range(2):
        out.append(f"s_add_u32 m0, s{S_LX}, {LX + slot*8192 + j*1024}\ns_nop 0\n"
                   f"buffer_load_dwordx4 v{V_X0+j}, {SR(SRD_X)}, s{S_SX} offen lds")
    for j in range(4):
        out.append(f"s_add_u32 m0, s{S_LW}, {slot*16384 + j*1024}\ns_nop 0\n"
                   f"buffer_load_dwordx4 v{V_WQ+j}, {SR(SRD_WQ)}, s{S_SW} offen lds")
    return out

def kv_dma(which):
    out = []
    for j in range(4):
        if which == "k": x, base, srdr, v0 = j << 6, LK, SRD_K, V_K0
        else: x, base, srdr, v0 = (j & 1) << 7, LV, SRD_V, V_V0
        out.append(f"v_xor_b32 v{V_T+j}, {x}, v{v0}\ns_add_u32 m0, s{S_KVB}, {base}\ns_nop 0\n"
                   f"buffer_load_dwordx4 v{V_T+j}, {SR(srdr)}, s{S_KVB} offen offset:{j*1024} lds")
    return out

def readaddrs(k):
    l = V_LANE
    k(f"""
    s_lshr_b32 s{S_T3}, s{S_W}, 1          ; mi
    s_and_b32 s{S_T4}, s{S_W}, 1           ; ni
    v_and_b32 v{V_T}, 31, v{l}
    v_lshrrev_b32 v{V_T+1}, 5, v{l}        ; hi
    v_bfe_u32 v{V_T+2}, v{l}, 1, 3
    v_xor_b32 v{V_T+2}, v{V_T+2}, v{V_T+1}
    v_lshlrev_b32 v{V_T+2}, 4, v{V_T+2}
    v_lshl_add_u32 v{V_T+2}, v{V_T}, 7, v{V_T+2}
    s_lshl_b32 s{S_T5}, s{S_T3}, 12
    v_add_u32 v{V_XR}, s{S_T5}, v{V_T+2}
    v_xor_b32 v{V_XR+1}, 32, v{V_XR}
    v_xor_b32 v{V_XR+2}, 64, v{V_XR}
    v_xor_b32 v{V_XR+3}, 96, v{V_XR}
    v_bfe_u32 v{V_T}, v{l}, 2, 2
    v_bfe_u32 v{V_T+2}, v{l}, 4, 1
    v_bfe_u32 v{V_T+3}, v{l}, 1, 1
    v_lshl_add_u32 v{V_T+2}, v{V_T+2}, 1, v{V_T+3}
    s_lshl_b32 s{S_T5}, s{S_T4}, 3
    v_add_u32 v{V_T+2}, s{S_T5}, v{V_T+2}
    v_lshlrev_b32 v{V_T+3}, 2, v{V_T}
    v_xor_b32 v{V_T+2}, v{V_T+2}, v{V_T+3}
    v_lshlrev_b32 v{V_T+2}, 4, v{V_T+2}
    v_lshl_add_u32 v{V_T}, v{V_T+1}, 3, v{V_T}
    v_lshl_add_u32 v{V_T+2}, v{V_T}, 8, v{V_T+2}
    v_and_b32 v{V_T+3}, 1, v{l}
    v_lshl_add_u32 v{V_T+2}, v{V_T+3}, 3, v{V_T+2}
    v_add_u32 v{V_WR}, {LW}, v{V_T+2}
    v_xor_b32 v{V_WR+1}, 64, v{V_WR}
    v_add_u32 v{V_WR+2}, 0x10000, v{V_WR}
    v_add_u32 v{V_WR+3}, 0x10000, v{V_WR+1}
    v_and_b32 v{V_T}, 15, v{l}
    v_lshrrev_b32 v{V_T+1}, 4, v{l}
    v_xor_b32 v{V_T+2}, v{V_T}, v{V_T+1}
    v_lshlrev_b32 v{V_T+2}, 4, v{V_T+2}
    v_lshl_add_u32 v{V_T+2}, v{V_T}, 8, v{V_T+2}
    v_add_u32 v{V_QK}, {LK}, v{V_T+2}
    v_xor_b32 v{V_QK+1}, 64, v{V_QK}
    v_xor_b32 v{V_QK+2}, 128, v{V_QK}
    v_xor_b32 v{V_QK+3}, 192, v{V_QK}
    s_lshl_b32 s{S_T5}, s{S_W}, 12
    s_add_u32 s{S_T5}, s{S_T5}, {LQ}
    v_add_u32 v{V_QR}, s{S_T5}, v{V_T+2}
    v_xor_b32 v{V_QR+1}, 64, v{V_QR}
    v_xor_b32 v{V_QR+2}, 128, v{V_QR}
    v_xor_b32 v{V_QR+3}, 192, v{V_QR}
    v_and_b32 v{V_T+2}, 31, v{l}
    v_lshrrev_b32 v{V_T+3}, 5, v{l}
    s_lshl_b32 s{S_T5}, s{S_T4}, 3
    v_xor_b32 v{V_T}, s{S_T5}, v{V_T}
    v_lshlrev_b32 v{V_T}, 4, v{V_T}
    v_lshl_add_u32 v{V_T}, v{V_T+2}, 8, v{V_T}
    v_lshl_add_u32 v{V_T}, v{V_T+3}, 3, v{V_T}
    s_lshl_b32 s{S_T5}, s{S_T3}, 13
    s_add_u32 s{S_T5}, s{S_T5}, {LQ}
    v_add_u32 v{V_QW}, s{S_T5}, v{V_T}
    v_bfe_u32 v{V_T}, v{l}, 2, 2
    v_lshl_add_u32 v{V_T+2}, v{V_T+1}, 2, v{V_T}
    v_and_b32 v{V_T+3}, 7, v{V_T+2}
    v_lshlrev_b32 v{V_T+3}, 1, v{V_T+3}
    v_bfe_u32 v{V_T}, v{l}, 1, 1
    v_xor_b32 v{V_T+3}, v{V_T+3}, v{V_T}
    v_lshlrev_b32 v{V_T+3}, 4, v{V_T+3}
    v_lshl_add_u32 v{V_T+2}, v{V_T+2}, 8, v{V_T+3}
    v_and_b32 v{V_T}, 1, v{l}
    v_lshl_add_u32 v{V_T+2}, v{V_T}, 3, v{V_T+2}
    v_add_u32 v{V_VR}, {LV}, v{V_T+2}
    v_mov_b32 v{V_C}, 0x3e0293ee
    v_mov_b32 v{V_C+1}, 0x3e0293ee
    v_mov_b32 v{V_ONE}, 0x3f803f80
    v_mov_b32 v{V_ONE+1}, 0x3f803f80
    v_mov_b32 v{V_ONE+2}, 0x3f803f80
    v_mov_b32 v{V_ONE+3}, 0x3f803f80
    """)

def qreads(tau):
    i, s = divmod(tau, 4)
    slot = i % 5
    fb = FR + 12*(tau % 4)
    l = [f"ds_read_b128 {R4(fb)}, v{V_XR+s} offset:{LX + slot*8192}"]
    for t in range(2):
        if slot < 4: ar, off = V_WR + t, slot*16384
        else: ar, off = V_WR + 2 + t, 0
        for e in range(2):
            r = fb + 4 + 4*t + 2*e
            l.append(f"ds_read_b64_tr_b16 v[{r}:{r+1}], v{ar} offset:{off + (16*s + 4*e)*256}")
    return l

def qmfma(tau, t):
    fb = FR + 12*(tau % 4)
    acc = f"v[{ACC+16*t}:{ACC+16*t+15}]"
    c = "0" if tau == 0 else acc
    return f"v_mfma_f32_32x32x16_bf16 {acc}, {R4(fb+4+4*t)}, {R4(fb)}, {c}"

def phase1(k, opt):
    nt = 0
    chunk_offsets(k, 0)
    for d in chunk_dma(0): k(d)
    setup2(k, opt)
    for i in range(1, 3):
        chunk_offsets(k, i)
        for d in chunk_dma(i): k(d)
    nt = touch(k, opt)
    k.cp("issued3")
    readaddrs(k)
    for i in range(3, 5):
        chunk_offsets(k, i)
        for d in chunk_dma(i): k(d)
    k.cp("issued")
    def outstanding_after(j, issued):
        idx = [n for n, _ in issued].index(f"c{j}")
        return sum(c for _, c in issued[idx+1:])
    issued = [("c0", 6), ("c1", 6), ("c2", 6), ("t", nt), ("c3", 6), ("c4", 6)]
    k(f"s_waitcnt vmcnt({outstanding_after(0, issued)}) lgkmcnt(0)")
    k("s_barrier")
    k.cp("bar0")
    for tau in range(3):
        for ins in qreads(tau): k(ins)
    kreads = []
    for s in range(4):
        for t in range(4):
            r = KF + (t*4 + s)*4
            kreads.append(f"ds_read_b128 {R4(r)}, v{V_QK+s} offset:{t*4096}")
    pend = []
    for tau in range(32):
        nout = 10 if tau <= 28 else (10 if False else None)
        if tau <= 29: later = 10
        elif tau == 30: later = 5
        else: later = 0
        kissued = {29: 0, 30: 5, 31: 10}.get(tau, 0)
        k(f"s_waitcnt lgkmcnt({min(15, later + kissued)})")
        k(qmfma(tau, 0))
        if tau % 4 == 1:
            j = (tau + 3)//4
            if j <= 7:
                n = outstanding_after(j, issued)
                if j == 7: n = outstanding_after(7, issued) - 4
                k(f"s_waitcnt vmcnt({n})")
                k("s_barrier")
                k.cp(f"bar{j}")
                if 2 <= j <= 4:
                    chunk_offsets(k, j+3)
                    pend = chunk_dma(j+3); issued.append((f"c{j+3}", 6))
                elif j == 5: pend = kv_dma("k"); issued.append(("K", 4))
                elif j == 6: pend = kv_dma("v"); issued.append(("V", 4))
        if tau <= 28:
            rd = qreads(tau+3); g0, g1 = rd[:3], rd[3:]
        else:
            base = (tau - 29)*5
            kk = kreads[base:base+5]; g0, g1 = kk[:3], kk[3:]
        for ins in g0: k(ins)
        if pend and tau % 4 != 1: k(pend.pop(0))
        k(qmfma(tau, 1))
        for ins in g1: k(ins)
        if pend: k(pend.pop(0))
    assert not pend
    k(kreads[15])
    k.cp("loopend")
    for j in range(8):
        k(f"v_xor_b32 v{V_T2+8+j}, {j << 4}, v{V_QW}")
    k("s_nop 3")
    for t in range(2):
        for j in range(4):
            a = ACC + 16*t + 4*j
            d = V_T2 + 2*((t*4+j) % 4)
            k(f"v_cvt_pk_bf16_f32 v{d}, v{a}, v{a+1}\nv_cvt_pk_bf16_f32 v{d+1}, v{a+2}, v{a+3}")
            k(f"ds_write_b64 v{V_T2+8+4*t+j}, v[{d}:{d+1}]")
    for u in range(8):
        k(f"v_xor_b32 v{V_T2+8+u}, {u << 5}, v{V_VR}")
    k("s_waitcnt vmcnt(0) lgkmcnt(0)")
    k("s_barrier")
    k.cp("qbar")
    for s in range(4):
        k(f"ds_read_b128 {R4(QF+4*s)}, v{V_QR+s}")
    vreads = []
    for s in range(2):
        for u in range(8):
            for e in range(2):
                r = VF + (u*2 + s)*4 + 2*e
                vreads.append(f"ds_read_b64_tr_b16 v[{r}:{r+1}], v{V_T2+8+u} offset:{(32*s + 16*e)*256}")
    vi = 0
    for s in range(4):
        k(f"s_waitcnt lgkmcnt({min(15, (3-s) + vi)})")
        for t in range(4):
            acc = R4(SA+4*t)
            c = "0" if s == 0 else acc
            k(f"v_mfma_f32_16x16x32_bf16 {acc}, {R4(KF + (t*4 + s)*4)}, {R4(QF+4*s)}, {c}")
            if s >= 1 or t >= 2:
                k(vreads[vi]); vi += 1
    k("s_waitcnt lgkmcnt(5)")
    while vi < 24:
        k(vreads[vi]); vi += 1
    k.cp("smfma")
    M = V_T; M2 = V_T+1
    k(f"""
    v_max3_f32 v{M}, v{SA}, v{SA+1}, v{SA+2}
    v_max3_f32 v{M2}, v{SA+3}, v{SA+4}, v{SA+5}
    v_max3_f32 v{V_T+2}, v{SA+6}, v{SA+7}, v{SA+8}
    v_max3_f32 v{V_T+3}, v{SA+9}, v{SA+10}, v{SA+11}
    v_max3_f32 v{M}, v{M}, v{SA+12}, v{SA+13}
    v_max3_f32 v{M2}, v{M2}, v{SA+14}, v{SA+15}
    v_max3_f32 v{M}, v{M}, v{V_T+2}, v{V_T+3}
    v_max_f32 v{M}, v{M}, v{M2}
    v_mov_b32 v{M2}, v{M}
    s_waitcnt lgkmcnt(7)
    {vreads[24]}
    {vreads[25]}
    v_permlane32_swap_b32 v{M}, v{M2}
    {vreads[26]}
    v_max_f32 v{M}, v{M}, v{M2}
    v_mov_b32 v{M2}, v{M}
    {vreads[27]}
    {vreads[28]}
    v_permlane16_swap_b32 v{M}, v{M2}
    {vreads[29]}
    v_max_f32 v{M}, v{M}, v{M2}
    v_mul_f32 v{V_MN}, 0xbe0293ee, v{M}
    v_mul_f32 v{V_MN+1}, 0xbe0293ee, v{M}
    {vreads[30]}
    {vreads[31]}
    """)
    def pkfma(i): return f"v_pk_fma_f32 v[{SA+i}:{SA+i+1}], v[{SA+i}:{SA+i+1}], v[{V_C}:{V_C+1}], v[{V_MN}:{V_MN+1}]"
    for i in range(0, 16, 2): k(pkfma(i))
    for i in range(8): k(f"v_exp_f32 v{SA+i}, v{SA+i}")
    k("s_nop 0")
    for j in range(2):
        a = SA + 4*j
        k(f"v_cvt_pk_bf16_f32 v{PF+2*j}, v{a}, v{a+1}\nv_cvt_pk_bf16_f32 v{PF+2*j+1}, v{a+2}, v{a+3}")
    k("s_waitcnt lgkmcnt(0)")
    mf0 = [f"v_mfma_f32_16x16x32_bf16 {R4(OS)}, {R4(V_ONE)}, {R4(PF)}, 0"]
    for u in range(8):
        mf0.append(f"v_mfma_f32_16x16x32_bf16 {R4(OA+4*u)}, {R4(VF + (u*2)*4)}, {R4(PF)}, 0")
    k("s_nop 0")
    for i in range(8):
        k(mf0[i])
        k(f"v_exp_f32 v{SA+8+i}, v{SA+8+i}")
    k(mf0[8])
    for j in range(2):
        a = SA + 8 + 4*j
        k(f"v_cvt_pk_bf16_f32 v{PF+4+2*j}, v{a}, v{a+1}\nv_cvt_pk_bf16_f32 v{PF+4+2*j+1}, v{a+2}, v{a+3}")
    k.cp("softmax")
    k(f"""
    s_lshl_b32 s{S_T0}, s{S_B}, 1
    s_lshr_b32 s{S_T1}, s{S_W}, 1
    s_add_u32 s{S_T0}, s{S_T0}, s{S_T1}
    s_lshl_b32 s{S_T0}, s{S_T0}, 5
    s_add_u32 s{S_T0}, s{S_T0}, s{S_H}
    s_lshl_b32 s{S_T0}, s{S_T0}, 13
    s_and_b32 s{S_T1}, s{S_W}, 1
    s_lshl_b32 s{S_T1}, s{S_T1}, 10
    s_add_u32 s{S_T0}, s{S_T0}, s{S_T1}
    s_add_u32 s{S_T0}, s{S_T0}, {WS_O}
    s_add_u32 s{S_T1}, s{S_T0}, 4096
    """)
    k(f"v_mfma_f32_16x16x32_bf16 {R4(OS)}, {R4(V_ONE)}, {R4(PF+4)}, {R4(OS)}")
    for u in range(8):
        k(f"v_mfma_f32_16x16x32_bf16 {R4(OA+4*u)}, {R4(VF + (u*2+1)*4)}, {R4(PF+4)}, {R4(OA+4*u)}")
    k(f"v_rcp_f32 v{V_MN}, v{OS}")
    k(f"s_nop 0\nv_mov_b32 v{V_MN+1}, v{V_MN}")
    k.cp("pv")
    aux = opt.get("staux", "sc1")
    k("s_nop 4")
    for v in range(4):
        for j in range(2):
            a = OA + 4*(2*v + j)
            k(f"v_pk_mul_f32 v[{a}:{a+1}], v[{a}:{a+1}], v[{V_MN}:{V_MN+1}]")
            k(f"v_pk_mul_f32 v[{a+2}:{a+3}], v[{a+2}:{a+3}], v[{V_MN}:{V_MN+1}]")
        for j in range(2):
            a = OA + 4*(2*v + j); d = OP + 4*v + 2*j
            k(f"v_cvt_pk_bf16_f32 v{d}, v{a}, v{a+1}\nv_cvt_pk_bf16_f32 v{d+1}, v{a+2}, v{a+3}")
        so = S_T0 if v < 2 else S_T1
        k(f"buffer_store_dwordx4 {R4(OP+4*v)}, v{V_L16}, {SR(SRD_WS)}, s{so} offen offset:{(v%2)*2048} {aux}")
    k.cp("ostore")

def poll(k, voff, nlanes_mask_cmp, tag):
    lp, ld = k.label("poll"), k.label("polled")
    k(f"""
    s_mov_b32 s{S_CNT}, 0
    {lp}:
    buffer_load_dword v{V_DUMMY}, v{voff}, {SR(SRD_WS)}, 0 offen sc1
    s_add_u32 s{S_CNT}, s{S_CNT}, 1
    s_waitcnt vmcnt(0)
    v_cmp_ne_u32 vcc, s{S_NONCE}, v{V_DUMMY}
    s_cmp_ge_u32 s{S_CNT}, {SPIN_MAX}
    s_cbranch_scc1 {ld}
    s_cbranch_vccnz {lp}
    {ld}:
    """)

def phase2(k, opt):
    l = V_LANE
    ldaux = opt.get("ldaux", "sc1"); staux = opt.get("staux", "sc1")
    k(f"""
    v_lshrrev_b32 v{P_T}, 3, v{l}
    v_and_b32 v{P_T+1}, 7, v{l}
    v_bfe_u32 v{P_T+2}, v{l}, 4, 2
    v_lshlrev_b32 v{P_T+2}, 1, v{P_T+2}
    v_xor_b32 v{P_T+1}, v{P_T+1}, v{P_T+2}
    v_lshlrev_b32 v{P_T+1}, 4, v{P_T+1}
    v_lshl_add_u32 v{P_WD}, v{P_T}, 10, v{P_T+1}
    s_lshl_b32 s{S_LW}, s{S_W}, 10          ; lds: w*1024
    s_lshl_b32 s{S_SW}, s{S_W}, 13
    """)
    def wo_dma(i):
        return (f"s_add_u32 m0, s{S_LW}, {i*4096}\ns_add_u32 s{S_T2}, s{S_SW}, {i*32768}\n"
                f"buffer_load_dwordx4 v{P_WD}, {SR(SRD_WO)}, s{S_T2} offen lds")
    npre = opt.get("npre", 8)
    for i in range(npre): k(wo_dma(i))
    k(f"""
    s_waitcnt vmcnt({npre}) lgkmcnt(0)
    s_mul_i32 s{S_NONCE}, s{S_NONCE}, 0x9e3779b1
    s_add_u32 s{S_NONCE}, s{S_NONCE}, 0x7f4a7c15
    s_barrier
    """)
    k.cp("drain")
    lab = k.label("noflag")
    k(f"""
    s_cmp_lg_u32 s{S_W}, 0
    s_cbranch_scc1 {lab}
    s_lshl_b32 s{S_T0}, s{S_B}, 2
    s_lshr_b32 s{S_T1}, s{S_H}, 3
    s_add_u32 s{S_T0}, s{S_T0}, s{S_T1}
    s_lshl_b32 s{S_T0}, s{S_T0}, 7
    s_and_b32 s{S_T1}, s{S_H}, 7
    s_lshl_b32 s{S_T1}, s{S_T1}, 2
    s_add_u32 s{S_T0}, s{S_T0}, s{S_T1}
    s_add_u32 s{S_T0}, s{S_T0}, {WS_FLAG1}
    v_mov_b32 v{P_T}, s{S_NONCE}
    v_mov_b32 v{P_T+1}, 0
    s_mov_b64 s[{S_SAVE}:{S_SAVE+1}], exec
    s_mov_b64 exec, 1
    buffer_store_dword v{P_T}, v{P_T+1}, {SR(SRD_WS)}, s{S_T0} offen sc1
    s_mov_b64 exec, s[{S_SAVE}:{S_SAVE+1}]
    {lab}:
    """)
    for i in range(npre, 32): k(wo_dma(i))
    k(f"""
    v_lshrrev_b32 v{P_T}, 4, v{l}
    v_bfe_u32 v{P_T+1}, v{l}, 2, 2
    v_lshl_add_u32 v{P_T+1}, v{P_T}, 2, v{P_T+1}      ; row
    v_bfe_u32 v{P_T+2}, v{P_T+1}, 1, 2
    v_lshlrev_b32 v{P_T+2}, 1, v{P_T+2}
    v_bfe_u32 v{P_T+3}, v{l}, 1, 1
    v_xor_b32 v{P_T+2}, v{P_T+2}, v{P_T+3}
    v_lshlrev_b32 v{P_T+2}, 4, v{P_T+2}
    v_lshl_add_u32 v{P_T+1}, v{P_T+1}, 7, v{P_T+2}
    v_and_b32 v{P_T+2}, 1, v{l}
    v_lshl_add_u32 v{P_T+1}, v{P_T+2}, 3, v{P_T+1}
    s_lshr_b32 s{S_T3}, s{S_W}, 1           ; kh
    s_and_b32 s{S_T4}, s{S_W}, 1            ; mh
    s_lshl_b32 s{S_T5}, s{S_T3}, 16
    v_add_u32 v{P_WR}, s{S_T5}, v{P_T+1}
    v_xor_b32 v{P_WR+1}, 32, v{P_WR}
    v_xor_b32 v{P_WR+2}, 64, v{P_WR}
    v_xor_b32 v{P_WR+3}, 96, v{P_WR}
    s_lshl_b32 s{S_T0}, s{S_B}, 1
    s_add_u32 s{S_T0}, s{S_T0}, s{S_T4}
    s_lshl_b32 s{S_T0}, s{S_T0}, 5
    s_lshl_b32 s{S_T1}, s{S_KQ}, 3
    s_add_u32 s{S_T0}, s{S_T0}, s{S_T1}
    s_lshl_b32 s{S_T1}, s{S_T3}, 2
    s_add_u32 s{S_T0}, s{S_T0}, s{S_T1}
    s_lshl_b32 s{S_SX}, s{S_T0}, 13
    s_add_u32 s{S_SX}, s{S_SX}, {WS_O}
    """)
    k.cp("woissued")
    lab = k.label("nopoll")
    k(f"""
    s_cmp_lg_u32 s{S_W}, 0
    s_cbranch_scc1 {lab}
    s_lshl_b32 s{S_T0}, s{S_B}, 2
    s_add_u32 s{S_T0}, s{S_T0}, s{S_KQ}
    s_lshl_b32 s{S_T0}, s{S_T0}, 7
    s_add_u32 s{S_T0}, s{S_T0}, {WS_FLAG1}
    v_and_b32 v{P_T}, 7, v{l}
    v_lshlrev_b32 v{P_T}, 2, v{P_T}
    v_add_u32 v{P_T}, s{S_T0}, v{P_T}
    """)
    poll(k, P_T, None, "1")
    k(f"{lab}:\ns_barrier")
    k.cp("poll1")
    for i in range(32):
        r = P_OF + 4*i
        if i % 4 == 0 and i > 0: k(f"s_add_u32 s{S_SX}, s{S_SX}, 4096")
        k(f"buffer_load_dwordx4 {R4(r)}, v{V_L16}, {SR(SRD_WS)}, s{S_SX} offen offset:{(i%4)*1024} {ldaux}")
    k("s_waitcnt vmcnt(32)")
    k("s_barrier")
    k.cp("wobar")
    def areads(kap):
        hk, v = divmod(kap, 4)
        base = P_AF + 16*(kap % 3)
        out = []
        for u in range(4):
            for e in range(2):
                r = base + 4*u + 2*e
                out.append(f"ds_read_b64_tr_b16 v[{r}:{r+1}], v{P_WR+u} offset:{(hk*128 + 32*v + 16*e)*128}")
        return out
    for ins in areads(0): k(ins)
    for n, ins in enumerate(areads(1)):
        if n == 6: k("s_waitcnt lgkmcnt(12)")
        k(ins)
    for kap in range(16):
        later = 7 if kap <= 14 else 0
        k(f"s_waitcnt vmcnt({30 - 2*kap}) lgkmcnt({later})")
        nxt = areads(kap+2) if kap + 2 < 16 else []
        base = P_AF + 16*(kap % 3)
        n = 0
        for u in range(4):
            for mg in range(2):
                acc = R4(P_ACC + (u*2+mg)*4)
                c = "0" if kap == 0 else acc
                k(f"v_mfma_f32_16x16x32_bf16 {acc}, {R4(base+4*u)}, {R4(P_OF + 4*(2*kap+mg))}, {c}")
                if nxt: k(nxt[n])
                n += 1
    k.cp("gemm2")
    k(f"""
    s_lshl_b32 s{S_T0}, s{S_W}, 12
    s_add_u32 s{S_T0}, s{S_T0}, {LRED}
    v_add_u32 v{P_T}, s{S_T0}, v{V_L16}
    s_xor_b32 s{S_T1}, s{S_W}, 2
    s_lshl_b32 s{S_T1}, s{S_T1}, 12
    s_add_u32 s{S_T1}, s{S_T1}, {LRED}
    v_add_u32 v{P_T+1}, s{S_T1}, v{V_L16}
    s_cmp_eq_u32 s{S_T3}, 0
    """)
    la, lb = k.label("kh1"), k.label("red")
    k(f"s_cbranch_scc0 {la}\ns_nop 2")
    for t in range(4):
        k(f"ds_write_b128 v{P_T}, {R4(P_ACC + (4+t)*4)} offset:{t*1024}")
    k(f"s_branch {lb}\n{la}:\ns_nop 2")
    for t in range(4):
        k(f"ds_write_b128 v{P_T}, {R4(P_ACC + t*4)} offset:{t*1024}")
    k("s_waitcnt lgkmcnt(0)")
    for r in range(16):
        k(f"v_mov_b32 v{P_ACC + r}, v{P_ACC + 16 + r}")
    k(f"{lb}:\ns_waitcnt lgkmcnt(0)\ns_barrier")
    for t in range(4):
        k(f"ds_read_b128 {R4(P_AF + 4*t)}, v{P_T+1} offset:{t*1024}")
    k(f"""
    s_lshl_b32 s{S_T0}, s{S_B}, 3
    s_add_u32 s{S_T0}, s{S_T0}, s{S_NB}
    s_lshl_b32 s{S_T5}, s{S_T0}, 16
    s_add_u32 s{S_T5}, s{S_T5}, {WS_P}
    s_lshl_b32 s{S_T1}, s{S_W}, 10
    s_add_u32 s{S_T5}, s{S_T5}, s{S_T1}      ; + w*1KB
    s_lshl_b32 s{S_T1}, s{S_KQ}, 12
    s_add_u32 s{S_T6}, s{S_T5}, s{S_T1}
    s_waitcnt lgkmcnt(0)
    """)
    for r in range(0, 16, 2):
        k(f"v_pk_add_f32 v[{P_ACC+r}:{P_ACC+r+1}], v[{P_ACC+r}:{P_ACC+r+1}], v[{P_AF+r}:{P_AF+r+1}]")
    k.cp("red")
    for d in range(4):
        ls = k.label("own"); le = k.label("nx")
        k(f"""
        s_cmp_eq_u32 s{S_KQ}, {d}
        s_cbranch_scc1 {ls}
        s_add_u32 s{S_T0}, s{S_T6}, {d*16384}
        buffer_store_dwordx4 {R4(P_ACC+4*d)}, v{V_L16}, {SR(SRD_WS)}, s{S_T0} offen {staux}
        s_branch {le}
        {ls}:
        """)
        for r in range(4): k(f"v_mov_b32 v{P_AF+r}, v{P_ACC+4*d+r}")
        k(f"{le}:")
    k("s_waitcnt vmcnt(0)\ns_barrier")
    k.cp("drain2")
    lab = k.label("nopoll2")
    k(f"""
    s_cmp_lg_u32 s{S_W}, 0
    s_cbranch_scc1 {lab}
    s_lshl_b32 s{S_T0}, s{S_B}, 3
    s_add_u32 s{S_T0}, s{S_T0}, s{S_NB}
    s_lshl_b32 s{S_T0}, s{S_T0}, 7
    s_add_u32 s{S_T0}, s{S_T0}, {WS_FLAG2}
    s_lshl_b32 s{S_T1}, s{S_KQ}, 2
    s_add_u32 s{S_T1}, s{S_T1}, s{S_T0}
    v_mov_b32 v{P_T}, s{S_NONCE}
    v_mov_b32 v{P_T+1}, 0
    s_mov_b64 s[{S_SAVE}:{S_SAVE+1}], exec
    s_mov_b64 exec, 1
    buffer_store_dword v{P_T}, v{P_T+1}, {SR(SRD_WS)}, s{S_T1} offen sc1
    s_mov_b64 exec, s[{S_SAVE}:{S_SAVE+1}]
    v_and_b32 v{P_T}, 3, v{l}
    v_lshlrev_b32 v{P_T}, 2, v{P_T}
    v_add_u32 v{P_T}, s{S_T0}, v{P_T}
    """)
    poll(k, P_T, None, "2")
    lb2 = k.label("nobump")
    k(f"""
    s_or_b32 s{S_T0}, s{S_G}, s{S_HH}
    s_cmp_lg_u32 s{S_T0}, 0
    s_cbranch_scc1 {lb2}
    s_lshl_b32 s{S_T0}, s{S_B}, 7
    s_add_u32 s{S_T0}, s{S_T0}, {WS_NONCE}
    v_mov_b32 v{P_T}, s{S_NONCE}
    v_mov_b32 v{P_T+1}, 0
    s_mov_b64 s[{S_SAVE}:{S_SAVE+1}], exec
    s_mov_b64 exec, 1
    buffer_store_dword v{P_T}, v{P_T+1}, {SR(SRD_WS)}, s{S_T0} offen
    s_mov_b64 exec, s[{S_SAVE}:{S_SAVE+1}]
    {lb2}:
    """)
    k(f"{lab}:\ns_barrier")
    k.cp("poll2")
    k(f"s_lshl_b32 s{S_T1}, s{S_KQ}, 14\ns_add_u32 s{S_T5}, s{S_T5}, s{S_T1}")
    for d in range(1, 4):
        k(f"""
        s_add_u32 s{S_T0}, s{S_KQ}, {d}
        s_and_b32 s{S_T0}, s{S_T0}, 3
        s_lshl_b32 s{S_T0}, s{S_T0}, 12
        s_add_u32 s{S_T0}, s{S_T0}, s{S_T5}
        buffer_load_dwordx4 {R4(P_AF+4*d)}, v{V_L16}, {SR(SRD_WS)}, s{S_T0} offen {ldaux}
        """)
    k(f"""
    s_and_b32 s{S_T0}, s{S_W}, 1
    s_lshl_b32 s{S_T0}, s{S_T0}, 1
    s_and_b32 s{S_T1}, s{S_KQ}, 1
    s_add_u32 s{S_T0}, s{S_T0}, s{S_T1}
    s_lshl_b32 s{S_T0}, s{S_T0}, 4
    s_lshl_b32 s{S_T1}, s{S_B}, 6
    s_add_u32 s{S_T0}, s{S_T0}, s{S_T1}
    s_lshl_b32 s{S_T0}, s{S_T0}, 10
    s_lshr_b32 s{S_T1}, s{S_W}, 1
    s_lshl_b32 s{S_T1}, s{S_T1}, 1
    s_lshr_b32 s{S_T2}, s{S_KQ}, 1
    s_add_u32 s{S_T1}, s{S_T1}, s{S_T2}       ; u
    s_lshl_b32 s{S_T1}, s{S_T1}, 5
    s_add_u32 s{S_T0}, s{S_T0}, s{S_T1}
    s_lshl_b32 s{S_T1}, s{S_NB}, 7
    s_add_u32 s{S_T0}, s{S_T0}, s{S_T1}
    v_and_b32 v{P_T+1}, 15, v{l}
    v_lshrrev_b32 v{P_T+2}, 4, v{l}
    v_lshlrev_b32 v{P_T+2}, 3, v{P_T+2}
    v_lshl_add_u32 v{P_T+1}, v{P_T+1}, 10, v{P_T+2}
    s_waitcnt vmcnt(0)
    """)
    A = P_AF
    k(f"""
    v_pk_add_f32 v[{A}:{A+1}], v[{A}:{A+1}], v[{A+4}:{A+5}]
    v_pk_add_f32 v[{A+2}:{A+3}], v[{A+2}:{A+3}], v[{A+6}:{A+7}]
    v_pk_add_f32 v[{A+8}:{A+9}], v[{A+8}:{A+9}], v[{A+12}:{A+13}]
    v_pk_add_f32 v[{A+10}:{A+11}], v[{A+10}:{A+11}], v[{A+14}:{A+15}]
    v_pk_add_f32 v[{A}:{A+1}], v[{A}:{A+1}], v[{A+8}:{A+9}]
    v_pk_add_f32 v[{A+2}:{A+3}], v[{A+2}:{A+3}], v[{A+10}:{A+11}]
    v_cvt_pk_bf16_f32 v{A+4}, v{A}, v{A+1}
    v_cvt_pk_bf16_f32 v{A+5}, v{A+2}, v{A+3}
    buffer_store_dwordx2 v[{A+4}:{A+5}], v{P_T+1}, {SR(SRD_OUT)}, s{S_T0} offen
    """)
    k.cp("end")

def descriptor(name, vgpr, sgpr=102):
    acc = (vgpr + 3)//4*4
    return f""".amdhsa_kernel {name}
  .amdhsa_next_free_vgpr {vgpr}
  .amdhsa_next_free_sgpr {sgpr}
  .amdhsa_accum_offset {acc}
  .amdhsa_group_segment_fixed_size 0
  .amdhsa_kernarg_size 64
  .amdhsa_user_sgpr_count 2
  .amdhsa_user_sgpr_kernarg_segment_ptr 1
  .amdhsa_system_sgpr_workgroup_id_x 1
.end_amdhsa_kernel
"""

HEADER = """; GQA block: Q projection -> attention over the cached K/V block -> output projection (bf16, gfx950).
"""

def gen(opt=None, stop_at=None):
    opt = opt or {}
    out = HEADER + f"; @launch grid=(256,1,1) block=(256,1,1) lds={LDS_TOTAL}\n"
    out += '.amdgcn_target "amdgcn-amd-amdhsa--gfx950"\n.text\n'
    k = K(stop_at)
    k.a(f".globl {KNAME}\n.p2align 8\n.type {KNAME},@function\n{KNAME}:")
    if stop_at: k.stamp()
    k("s_cmp_ge_u32 s2, 256\ns_cbranch_scc1 L_done")
    setup(k, opt)
    k.cp("srds")
    phase1(k, opt)
    phase2(k, opt)
    k("L_done:\ns_endpgm")
    out += k.a.text()
    out += '.section .rodata,"a"\n.p2align 6\n' + descriptor(KNAME, NVGPR)
    return out

if __name__ == "__main__":
    open(sys.argv[1] if len(sys.argv) > 1 else "cdna_kernels/%s.s" % NAME, "w").write(gen())
```
